```python
import torch

def _softmax(x, axis=-1):
    return torch.softmax(x, dim=axis)

def _gelu(x):
    return torch.nn.functional.gelu(x, approximate='tanh')

def _silu(x):
    return torch.nn.functional.silu(x)

def _sigmoid(x):
    return torch.sigmoid(x)

def _layernorm(x, axis=-1, eps=1e-05):
    m = x.mean(dim=axis, keepdim=True)
    v = x.var(dim=axis, keepdim=True, unbiased=False)
    return (x - m) / torch.sqrt(v + eps)

def _scatter_add(tgt, idx, src, axis=0):
    return tgt.clone().index_add_(axis, idx, src)

def _segment_sum(src, seg, n):
    out = torch.zeros((n,) + src.shape[1:], dtype=src.dtype)
    return out.index_add_(0, seg, src)

def _pad(x, pw):
    flat = tuple((v for pair in reversed(pw) for v in pair))
    return torch.nn.functional.pad(x, flat)
kernel_name = 'gated_mix__spectral_gfnet__memory_aug_recurrent_mem_tr__prompt'

def setup_inputs():

    _w = lambda a: (lambda t: t.to(torch.bfloat16) if t.is_floating_point() else t)(torch.as_tensor(a))

    def _A_setup():
        B, S, D = (1, 2048, 640)
        Df = D // 2 + 1
        return {'x': _w((lambda *s: torch.randn(*s, dtype=torch.bfloat16) * 0.05)(B, S, D)), 'w_r': _w((lambda *s: torch.randn(*s, dtype=torch.bfloat16) * 3.2)(S, Df) * 0.02), 'w_i': _w((lambda *s: torch.randn(*s, dtype=torch.bfloat16) * 3.2)(S, Df) * 0.02)}
    _A_in = _A_setup()

    def _B_setup():
        B, S, Dm = (1, 2048, 640)
        H, Dh = (32, 128)
        M, seg = (8, 32)
        seg = min(seg, S)
        S = S // seg * seg
        return {'x': _w((lambda *s: torch.randn(*s, dtype=torch.bfloat16) * 0.05)(B, S, Dm)), 'mem0': _w((lambda *s: torch.randn(*s, dtype=torch.bfloat16) * 0.4)(B, M, Dm)), 'Wq': _w((lambda *s: torch.randn(*s, dtype=torch.bfloat16) * 6.4)(Dm, H, Dh) * Dm ** (-0.5)), 'Wk': _w((lambda *s: torch.randn(*s, dtype=torch.bfloat16) * 6.4)(Dm, H, Dh) * Dm ** (-0.5)), 'Wv': _w((lambda *s: torch.randn(*s, dtype=torch.bfloat16) * 0.4)(Dm, H, Dh) * Dm ** (-0.5)), 'Wo': _w((lambda *s: torch.randn(*s, dtype=torch.bfloat16) * 0.4)(H, Dh, Dm) * (H * Dh) ** (-0.5)), 'seg_len': seg}
    _B_in = _B_setup()
    return {'A_x': _A_in['x'], 'A_w_r': _A_in['w_r'], 'A_w_i': _A_in['w_i'], 'B_x': _B_in['x'], 'B_mem0': _B_in['mem0'], 'B_Wq': _B_in['Wq'], 'B_Wk': _B_in['Wk'], 'B_Wv': _B_in['Wv'], 'B_Wo': _B_in['Wo'], 'B_seg_len': _B_in['seg_len'], 'gate_w': _w((lambda *s: torch.randn(*s, dtype=torch.bfloat16) * 0.05)(640) * 16.0)}

def reference(A_x, A_w_r, A_w_i, B_x, B_mem0, B_Wq, B_Wk, B_Wv, B_Wo, B_seg_len, gate_w):

    def _A_ref(x, w_r, w_i):
        B, S, D = x.shape
        X = (lambda x, axes=(-2, -1): torch.fft.rfft2(x.float(), dim=axes))(x, axes=(-2, -1))
        W = w_r + 1j * w_i
        X = X * W
        y = (lambda x, s, axes=(-2, -1): torch.fft.irfft2(x, s=s, dim=axes).to(torch.bfloat16))(X, (S, D), axes=(-2, -1))
        return y

    def _B_ref(x, mem0, Wq, Wk, Wv, Wo, seg_len):
        B, S, Dm = x.shape
        H, Dh = (Wq.shape[1], Wq.shape[2])
        M = mem0.shape[1]
        scale = Dh ** (-0.5)
        n_seg = S // seg_len
        L = M + seg_len
        idx = torch.arange(L)
        mask = (idx[:, None] < M) | (idx[:, None] >= idx[None, :])
        mem = mem0
        outs = []
        for s in range(n_seg):
            xs = x[:, s * seg_len:(s + 1) * seg_len, :].clone()
            h = torch.concatenate([mem, xs], axis=1)
            q = torch.einsum('btd,dhe->bhte', h, Wq)
            k = torch.einsum('btd,dhe->bhte', h, Wk)
            v = torch.einsum('btd,dhe->bhte', h, Wv)
            scores = torch.einsum('bhqe,bhke->bhqk', q, k) * scale
            scores = torch.where(mask[None, None], scores, -1000000000.0)
            p = _softmax(scores, axis=-1)
            o = torch.einsum('bhqk,bhke->bhqe', p, v)
            o = torch.einsum('bhte,hed->btd', o, Wo)
            mem = o[:, :M, :].clone()
            outs.append(o[:, M:, :])
        return torch.concatenate(outs, axis=1)
    x = A_x
    g = _sigmoid((x * gate_w).sum(-1, keepdims=True))
    a = _A_ref(x, A_w_r, A_w_i)
    b = _B_ref(x, B_mem0, B_Wq, B_Wk, B_Wv, B_Wo, B_seg_len)
    return g * a + (1 - g) * b
```

```python
class Asm:
    def __init__(self):
        self.lines = []
        self.uid = 0
    def __call__(self, s):
        for l in s.strip('\n').split('\n'):
            self.lines.append('    ' + l.strip())
    def label(self, name):
        self.lines.append(name + ':')
    def newlabel(self, base='L'):
        self.uid += 1
        return f'{base}_{self.uid}'
    def nop(self, n):
        while n > 0:
            k = min(n, 16)
            self(f's_nop {k-1}')
            n -= k
    def text(self):
        return '\n'.join(self.lines) + '\n'

def vr(a, n=1):
    return f'v{a}' if n == 1 else f'v[{a}:{a+n-1}]'
def sr(a, n=1):
    return f's{a}' if n == 1 else f's[{a}:{a+n-1}]'

def kernel_header(a, name):
    a.lines.append(f'.globl {name}')
    a.lines.append('.p2align 8')
    a.lines.append(f'.type {name},@function')
    a.label(name)

def kernel_desc(name, vgpr, sgpr=102, accum=None):
    if accum is None:
        accum = (vgpr + 3) // 4 * 4
    return f'''.amdhsa_kernel {name}
  .amdhsa_next_free_vgpr {vgpr}
  .amdhsa_next_free_sgpr {sgpr}
  .amdhsa_accum_offset {accum}
  .amdhsa_group_segment_fixed_size 0
  .amdhsa_kernarg_size 112
  .amdhsa_user_sgpr_count 2
  .amdhsa_user_sgpr_kernarg_segment_ptr 1
  .amdhsa_system_sgpr_workgroup_id_x 1
.end_amdhsa_kernel
'''

KA = dict(x=0, wr=8, wi=16, bx=24, mem0=32, wq=40, wk=48, wv=56, wo=64, seg=72, gate=80, out=88, dbg=96, ws=104)
SIZES = dict(x=2048*640*2, wr=2048*321*2, wi=2048*321*2, mem0=8*640*2, wq=640*4096*2, wk=640*4096*2, wv=640*4096*2,
             wo=4096*640*2, gate=640*2, out=2048*640*2, dbg=256, ws=0x10000000)

def load_srd(a, sreg, which, tmp):
    a(f's_load_dwordx2 s[{tmp}:{tmp+1}], s[0:1], {KA[which]}')
def build_srd(a, sreg, which, tmp):
    a(f's_mov_b32 s{sreg}, s{tmp}')
    a(f's_and_b32 s{sreg+1}, s{tmp+1}, 0xffff')
    a(f's_mov_b32 s{sreg+2}, {SIZES[which]:#x}')
    a(f's_mov_b32 s{sreg+3}, 0x00020000')

WT_OFF   = 0x00000000
WOT_OFF  = 0x00F00000
QK_OFF   = 0x01400000
VT_OFF   = 0x03400000
O_OFF    = 0x04400000
MEMF_OFF = 0x05400000
QKVM_OFF = 0x05500000
PART_OFF = 0x06100000
FILL_END = 0x08900000
CHI_OFF  = 0x08900000
CLO_OFF  = 0x08A00000
YT_OFF   = 0x08B00000
ZHI_OFF  = 0x09200000
ZLO_OFF  = 0x09500000
DHI_OFF  = 0x09800000
DLO_OFF  = 0x09900000
G_OFF    = 0x09A00000
```

```python
from emit import *

class Gemm:
    def __init__(self, a, BP, BQ, nacc=1, vbase=1):
        self.a = a; self.BP = BP; self.BQ = BQ
        self.TP = BP // 32; self.TQ = BQ // 32
        self.NPI = BP // 32; self.NQI = BQ // 32
        self.BUF = (BP + BQ) * 128
        assert self.BUF & (self.BUF - 1) == 0
        v = vbase
        def alloc(n, align=1):
            nonlocal v
            v = (v + align - 1) // align * align
            r = v; v += n; return r
        self.vL = alloc(1); self.vW = alloc(1); self.vN = alloc(1); self.vG = alloc(1)
        self.vT0 = alloc(1); self.vT1 = alloc(1)
        self.vPoff = alloc(self.NPI); self.vQoff = alloc(self.NQI)
        self.vLdsW = alloc(1)
        self.vRP0 = alloc(1); self.vRP1 = alloc(1); self.vRQ0 = alloc(1); self.vRQ1 = alloc(1)
        self.vStg = alloc(4 * (self.NPI + self.NQI), 4)
        self.vFP = alloc(4 * self.TP * 2, 4)
        self.vFQ = alloc(4 * self.TQ * 2, 4)
        self.vAcc = [alloc(4 * self.TP * self.TQ, 4) for _ in range(nacc)]
        self.vend = v

    def setup(self, ldP, ldQ):
        a = self.a
        a(f'v_and_b32 v{self.vL}, 63, v0')
        a(f'v_lshrrev_b32 v{self.vW}, 6, v0')
        a(f'v_and_b32 v{self.vN}, 15, v0')
        a(f'v_bfe_u32 v{self.vG}, v0, 4, 2')
        self.set_ld(ldP, ldQ)
        a(f'v_lshrrev_b32 v{self.vT0}, 3, v0')
        a(f'v_and_b32 v{self.vT1}, 7, v0')
        a(f'v_and_b32 v{self.vLdsW}, 7, v{self.vT0}')
        a(f'v_xor_b32 v{self.vLdsW}, v{self.vLdsW}, v{self.vT1}')
        a(f'v_lshlrev_b32 v{self.vLdsW}, 4, v{self.vLdsW}')
        a(f'v_lshl_add_u32 v{self.vLdsW}, v{self.vT0}, 7, v{self.vLdsW}')
        a(f'v_and_b32 v{self.vT0}, 7, v{self.vN}')
        a(f'v_xor_b32 v{self.vT0}, v{self.vT0}, v{self.vG}')
        a(f'v_lshlrev_b32 v{self.vT0}, 4, v{self.vT0}')
        a(f'v_lshl_add_u32 v{self.vT0}, v{self.vN}, 7, v{self.vT0}')
        a(f'v_and_b32 v{self.vT1}, 1, v{self.vW}')
        a(f'v_mul_u32_u24 v{self.vT1}, {self.BP//2*128}, v{self.vT1}')
        a(f'v_add_u32 v{self.vRP0}, v{self.vT0}, v{self.vT1}')
        a(f'v_xor_b32 v{self.vRP1}, 64, v{self.vRP0}')
        a(f'v_lshrrev_b32 v{self.vT1}, 1, v{self.vW}')
        a(f'v_mul_u32_u24 v{self.vT1}, {self.BQ//2*128}, v{self.vT1}')
        a(f'v_add_u32 v{self.vRQ0}, v{self.vT0}, v{self.vT1}')
        a(f'v_add_u32 v{self.vRQ0}, {self.BP*128}, v{self.vRQ0}')
        a(f'v_xor_b32 v{self.vRQ1}, 64, v{self.vRQ0}')

    def set_ld(self, ldP, ldQ):
        a = self.a
        a(f'v_lshrrev_b32 v{self.vT0}, 3, v0')
        a(f'v_and_b32 v{self.vT1}, 7, v0')
        a(f'v_lshlrev_b32 v{self.vT1}, 4, v{self.vT1}')
        for i in range(self.NPI):
            a(f'v_add_u32 v{self.vPoff+i}, {32*i}, v{self.vT0}')
            a(f'v_mul_u32_u24 v{self.vPoff+i}, {ldP}, v{self.vPoff+i}')
            a(f'v_add_u32 v{self.vPoff+i}, v{self.vPoff+i}, v{self.vT1}')
        for i in range(self.NQI):
            a(f'v_add_u32 v{self.vQoff+i}, {32*i}, v{self.vT0}')
            a(f'v_mul_u32_u24 v{self.vQoff+i}, {ldQ}, v{self.vQoff+i}')
            a(f'v_add_u32 v{self.vQoff+i}, v{self.vQoff+i}, v{self.vT1}')

    def zero_acc(self, k):
        for i in range(4 * self.TP * self.TQ):
            self.a(f'v_mov_b32 v{self.vAcc[k]+i}, 0')

    def _gload(self, sP, sQ, sPo, sQo):
        a = self.a
        for i in range(self.NPI):
            a(f'buffer_load_dwordx4 {vr(self.vStg+4*i,4)}, v{self.vPoff+i}, {sr(sP,4)}, s{sPo} offen')
        for i in range(self.NQI):
            a(f'buffer_load_dwordx4 {vr(self.vStg+4*(self.NPI+i),4)}, v{self.vQoff+i}, {sr(sQ,4)}, s{sQo} offen')
    def _swrite(self):
        a = self.a
        for i in range(self.NPI):
            a(f'ds_write_b128 v{self.vLdsW}, {vr(self.vStg+4*i,4)} offset:{4096*i}')
        for i in range(self.NQI):
            a(f'ds_write_b128 v{self.vLdsW}, {vr(self.vStg+4*(self.NPI+i),4)} offset:{self.BP*128+4096*i}')
    def _compute(self, acc):
        a = self.a
        for ks, (rp, rq) in enumerate(((self.vRP0, self.vRQ0), (self.vRP1, self.vRQ1))):
            for t in range(self.TP):
                a(f'ds_read_b128 {vr(self.vFP+4*(ks*self.TP+t),4)}, v{rp} offset:{2048*t}')
            for t in range(self.TQ):
                a(f'ds_read_b128 {vr(self.vFQ+4*(ks*self.TQ+t),4)}, v{rq} offset:{2048*t}')
        n1 = self.TP + self.TQ
        a(f's_waitcnt lgkmcnt({n1})')
        for ks in range(2):
            if ks == 1:
                a('s_waitcnt lgkmcnt(0)')
            for tp in range(self.TP):
                for tq in range(self.TQ):
                    d = acc + 4 * (tp * self.TQ + tq)
                    a(f'v_mfma_f32_16x16x32_bf16 {vr(d,4)}, {vr(self.vFP+4*(ks*self.TP+tp),4)}, {vr(self.vFQ+4*(ks*self.TQ+tq),4)}, {vr(d,4)}')
    def _toggle_w(self):
        self.a(f'v_xor_b32 v{self.vLdsW}, {self.BUF}, v{self.vLdsW}')
    def _toggle_r(self):
        for r in (self.vRP0, self.vRP1, self.vRQ0, self.vRQ1):
            self.a(f'v_xor_b32 v{r}, {self.BUF}, v{r}')

    def segment(self, sP, sQ, sPo, sQo, K, acck, sCnt):
        a = self.a
        n = K // 64
        acc = self.vAcc[acck]
        self._gload(sP, sQ, sPo, sQo)
        a('s_waitcnt vmcnt(0)')
        self._swrite()
        a('s_waitcnt lgkmcnt(0)')
        a('s_barrier')
        if n > 1:
            a(f's_mov_b32 s{sCnt}, {n-1}')
            L = a.newlabel('Lg')
            a.label(L)
            a(f's_add_u32 s{sPo}, s{sPo}, 128')
            a(f's_add_u32 s{sQo}, s{sQo}, 128')
            self._gload(sP, sQ, sPo, sQo)
            self._toggle_w()
            self._compute(acc)
            a('s_waitcnt vmcnt(0)')
            self._swrite()
            self._toggle_r()
            a('s_waitcnt lgkmcnt(0)')
            a('s_barrier')
            a(f's_sub_u32 s{sCnt}, s{sCnt}, 1')
            a(f's_cmp_lg_u32 s{sCnt}, 0')
            a(f's_cbranch_scc1 {L}')
        self._compute(acc)
        a('s_barrier')
```

```python
from emit import *

def gen_att(a):
    name = 'att_kernel'
    kernel_header(a, name)
    a('s_cmp_ge_u32 s2, 512')
    a('s_cbranch_scc1 La_end')
    a(f's_load_dwordx2 s[4:5], s[0:1], {KA["ws"]}')
    a('s_waitcnt lgkmcnt(0)')
    build_srd(a, 8, 'ws', 4)
    WS = 's[8:11]'
    v = 1
    def alloc(n, al=1):
        nonlocal v
        v = (v + al - 1) // al * al
        r = v; v += n; return r
    vL = alloc(1); vW = alloc(1); vN = alloc(1); vG = alloc(1); vH = alloc(1)
    T = alloc(8, 2)
    vQ = alloc(32, 4); vK = alloc(32, 4); vKM = alloc(16, 4); vVX = alloc(32, 4); vVM = alloc(16, 2)
    vS = alloc(24, 4)
    vPBx = alloc(8, 4); vPBm = alloc(4, 2)
    vO = alloc(64, 4)
    vend = v
    a(f'v_and_b32 v{vL}, 63, v0')
    a(f'v_lshrrev_b32 v{vW}, 6, v0')
    a(f'v_and_b32 v{vN}, 15, v0')
    a(f'v_bfe_u32 v{vG}, v0, 4, 2')
    a('s_lshr_b32 s12, s2, 3')
    a('s_and_b32 s13, s2, 7')
    a('s_lshl_b32 s13, s13, 2')
    a(f'v_add_u32 v{vH}, s13, v{vW}')
    a(f'v_lshlrev_b32 v{T}, 14, v{vN}')
    a(f'v_lshl_add_u32 v{T}, v{vH}, 8, v{T}')
    a(f'v_lshl_add_u32 v{T}, v{vG}, 4, v{T}')
    a('s_lshl_b32 s14, s12, 19')
    a(f's_add_u32 s14, s14, {QK_OFF:#x}')
    a(f's_add_u32 s15, s14, {16*16384}')
    a(f's_add_u32 s16, s14, 8192')
    a(f's_add_u32 s17, s15, 8192')
    for qt, so in ((0, 14), (1, 15)):
        for ks in range(4):
            a(f'buffer_load_dwordx4 {vr(vQ+16*qt+4*ks,4)}, v{T}, {WS}, s{so} offen offset:{64*ks}')
    for kt, so in ((0, 16), (1, 17)):
        for ks in range(4):
            a(f'buffer_load_dwordx4 {vr(vK+16*kt+4*ks,4)}, v{T}, {WS}, s{so} offen offset:{64*ks}')
    a(f'v_and_b32 v{T+1}, 7, v{vN}')
    a(f'v_lshl_add_u32 v{T+1}, v{vG}, 3, v{T+1}')
    a(f'v_lshlrev_b32 v{T+1}, 4, v{T+1}')
    a(f'v_mul_u32_u24 v{T+2}, 6144, v{vH}')
    a(f'v_add_u32 v{T+1}, v{T+1}, v{T+2}')
    a(f's_mul_i32 s18, s12, {32*6144}')
    a(f's_add_u32 s18, s18, {QKVM_OFF+2048:#x}')
    for ks in range(4):
        a(f'buffer_load_dwordx4 {vr(vKM+4*ks,4)}, v{T+1}, {WS}, s18 offen offset:{512*ks}')
    for i in range(16): a(f'v_mov_b32 v{vVM+i}, 0')
    a(f'v_and_b32 v{T+3}, 31, v{vL}')
    a(f'v_lshl_add_u32 v{T+3}, v{T+3}, 3, v{T+2}')
    a('s_add_u32 s19, s18, 2048')
    a('s_mov_b32 exec_hi, 0')
    for u in range(8):
        a(f'buffer_load_dwordx2 {vr(vVM+2*u,2)}, v{T+3}, {WS}, s19 offen offset:{256*u}')
    a('s_mov_b64 exec, -1')
    a(f'v_lshl_add_u32 v{T+4}, v{vH}, 7, v{vN}')
    a(f'v_lshlrev_b32 v{T+4}, 12, v{T+4}')
    a(f'v_lshl_add_u32 v{T+4}, v{vG}, 3, v{T+4}')
    a('s_lshl_b32 s20, s12, 6')
    a(f's_add_u32 s20, s20, {VT_OFF:#x}')
    for u in range(8):
        a(f'buffer_load_dwordx2 {vr(vVX+4*u,2)}, v{T+4}, {WS}, s20 offen')
        a(f'buffer_load_dwordx2 {vr(vVX+4*u+2,2)}, v{T+4}, {WS}, s20 offen offset:32')
        a(f's_add_u32 s20, s20, {16*4096}')
    a('s_mov_b32 s38, 0x3db504f3')
    a('s_mov_b32 s39, 0x3fb8aa3b')
    a('s_waitcnt vmcnt(16)')
    for ks in range(4):
        for qt in range(2):
            for Tt in range(3):
                d = vS + 12*qt + 4*Tt
                A = vKM + 4*ks if Tt == 0 else vK + 16*(Tt-1) + 4*ks
                c = '0' if ks == 0 else vr(d,4)
                a(f'v_mfma_f32_16x16x32_bf16 {vr(d,4)}, {vr(A,4)}, {vr(vQ+16*qt+4*ks,4)}, {c}')
    a.nop(8)
    for qt in range(2):
        S = vS + 12*qt
        for k in range(0, 12, 2):
            a(f'v_cvt_pk_bf16_f32 v{T}, v{S+k}, v{S+k+1}')
            a(f'v_lshlrev_b32 v{S+k}, 16, v{T}')
            a(f'v_and_b32 v{S+k+1}, 0xffff0000, v{T}')
            a(f'v_mul_f32 v{S+k}, s38, v{S+k}')
            a(f'v_mul_f32 v{S+k+1}, s38, v{S+k+1}')
            a(f'v_cvt_pk_bf16_f32 v{T}, v{S+k}, v{S+k+1}')
            a(f'v_lshlrev_b32 v{S+k}, 16, v{T}')
            a(f'v_and_b32 v{S+k+1}, 0xffff0000, v{T}')
        a('s_mov_b32 exec_lo, 0')
        for k in range(4):
            a(f'v_mov_b32 v{S+k}, 0xff800000')
        a('s_mov_b64 exec, -1')
        a(f'v_lshlrev_b32 v{T+1}, 2, v{vG}')
        a(f'v_sub_u32 v{T+1}, v{vN}, v{T+1}')
        a(f'v_add_u32 v{T+1}, {16*qt}, v{T+1}')
        a(f'v_mov_b32 v{T+2}, 0xff800000')
        for Tt in (1, 2):
            for r in range(4):
                kk = 16*(Tt-1) + r
                a(f'v_cmp_gt_i32 vcc, {kk}, v{T+1}')
                a.nop(2)
                a(f'v_cndmask_b32 v{S+4*Tt+r}, v{S+4*Tt+r}, v{T+2}, vcc')
        a(f'v_max3_f32 v{T}, v{S}, v{S+1}, v{S+2}')
        for k in range(3, 11, 2):
            a(f'v_max3_f32 v{T}, v{T}, v{S+k}, v{S+k+1}')
        a(f'v_max_f32 v{T}, v{T}, v{S+11}')
        def xreduce(op):
            for sw in ('v_permlane16_swap_b32', 'v_permlane32_swap_b32'):
                a(f'v_mov_b32 v{T+1}, v{T}')
                a.nop(2)
                a(f'{sw} v{T}, v{T+1}')
                a.nop(1)
                a(f'{op} v{T}, v{T}, v{T+1}')
        xreduce('v_max_f32')
        for k in range(12):
            a(f'v_sub_f32 v{S+k}, v{S+k}, v{T}')
            a(f'v_mul_f32 v{S+k}, s39, v{S+k}')
            a(f'v_exp_f32 v{S+k}, v{S+k}')
        a.nop(1)
        a(f'v_add_f32 v{T}, v{S}, v{S+1}')
        for k in range(2, 12):
            a(f'v_add_f32 v{T}, v{T}, v{S+k}')
        xreduce('v_add_f32')
        a(f'v_rcp_f32 v{T}, v{T}')
        a.nop(1)
        for k in range(12):
            a(f'v_mul_f32 v{S+k}, v{S+k}, v{T}')
        a(f'v_cvt_pk_bf16_f32 v{vPBm+2*qt}, v{S}, v{S+1}')
        a(f'v_cvt_pk_bf16_f32 v{vPBm+2*qt+1}, v{S+2}, v{S+3}')
        for k in range(4):
            a(f'v_cvt_pk_bf16_f32 v{vPBx+4*qt+k}, v{S+4+2*k}, v{S+5+2*k}')
    a('s_waitcnt vmcnt(0)')
    a.nop(2)
    for u in range(8):
        for qt in range(2):
            d = vO + 4*(2*u+qt)
            a(f'v_mfma_f32_16x16x32_bf16 {vr(d,4)}, {vr(vVX+4*u,4)}, {vr(vPBx+4*qt,4)}, 0')
    for u in range(8):
        for qt in range(2):
            d = vO + 4*(2*u+qt)
            a(f'v_mfma_f32_16x16x16_bf16 {vr(d,4)}, {vr(vVM+2*u,2)}, {vr(vPBm+2*qt,2)}, {vr(d,4)}')
    a(f'v_lshlrev_b32 v{T}, 13, v{vN}')
    a(f'v_lshl_add_u32 v{T}, v{vH}, 8, v{T}')
    a(f'v_lshl_add_u32 v{T}, v{vG}, 3, v{T}')
    a('s_lshl_b32 s14, s12, 18')
    a(f's_add_u32 s14, s14, {O_OFF:#x}')
    a(f's_add_u32 s15, s14, {16*8192}')
    a.nop(8)
    for u in range(8):
        for qt in range(2):
            d = vO + 4*(2*u+qt)
            t = vS + 2*((2*u+qt) % 12)
            a(f'v_cvt_pk_bf16_f32 v{t}, v{d}, v{d+1}')
            a(f'v_cvt_pk_bf16_f32 v{t+1}, v{d+2}, v{d+3}')
            a(f'buffer_store_dwordx2 {vr(t,2)}, v{T}, {WS}, s{14+qt} offen offset:{32*u}')
    a.label('La_end')
    a('s_endpgm')
    return name, vend
```

```python
from emit import *
from gemm import Gemm
from k_qkv import epi_T

def _mod640(a, t, q):
    a(f'v_lshrrev_b32 v{q}, 7, v{t}')
    a(f'v_mul_u32_u24 v{q}, 52429, v{q}')
    a(f'v_lshrrev_b32 v{q}, 18, v{q}')
    a(f'v_mul_u32_u24 v{q}, 640, v{q}')
    a(f'v_sub_u32 v{t}, v{t}, v{q}')

def _hilo_store(a, vals, ho, lo_, tmp):
    for i in range(4):
        a(f'v_cvt_pk_bf16_f32 v{tmp+i}, v{vals+2*i}, v{vals+2*i+1}')
        a(f'v_lshlrev_b32 v{tmp+8}, 16, v{tmp+i}')
        a(f'v_and_b32 v{tmp+9}, 0xffff0000, v{tmp+i}')
        a(f'v_sub_f32 v{tmp+8}, v{vals+2*i}, v{tmp+8}')
        a(f'v_sub_f32 v{tmp+9}, v{vals+2*i+1}, v{tmp+9}')
        a(f'v_cvt_pk_bf16_f32 v{tmp+4+i}, v{tmp+8}, v{tmp+9}')
    a(f'buffer_store_dwordx4 {vr(tmp,4)}, v{ho}, s[8:11], 0 offen')
    a(f'buffer_store_dwordx4 {vr(tmp+4,4)}, v{lo_}, s[8:11], 0 offen')

def gen_dft_matrices(a):
    from k_prep import B_C, B_D
    a(f's_cmp_ge_u32 s2, {B_D}')
    a('s_cbranch_scc1 Lp_D')
    a(f's_sub_u32 s17, s2, {B_C}')
    a('s_lshl_b32 s17, s17, 8')
    a('v_add_u32 v3, s17, v0')
    a('v_mul_u32_u24 v4, 52429, v3')
    a('v_lshrrev_b32 v4, 22, v4')
    a('v_mul_u32_u24 v5, 80, v4')
    a('v_sub_u32 v5, v3, v5')
    a('v_lshlrev_b32 v5, 3, v5')
    a('v_cmp_le_u32 vcc, 384, v4')
    a('v_subrev_u32 v6, 384, v4')
    a.nop(1)
    a('v_cndmask_b32 v6, v4, v6, vcc')
    a('v_mov_b32 v7, 160')
    a('v_cndmask_b32 v7, 0, v7, vcc')
    a('v_cmp_gt_u32 vcc, 321, v6')
    a('v_mov_b32 v9, 1.0')
    a.nop(1)
    a('v_cndmask_b32 v9, 0, v9, vcc')
    a('s_mov_b32 s18, 0x3acccccd')
    for i in range(8):
        a(f'v_add_u32 v10, {i}, v5')
        a('v_mul_u32_u24 v10, v10, v6')
        _mod640(a, 10, 11)
        a('v_add_u32 v10, v10, v7')
        a('v_cvt_f32_u32 v10, v10')
        a('v_mul_f32 v10, s18, v10')
        a('v_cos_f32 v10, v10')
        a.nop(1)
        a(f'v_mul_f32 v{16+i}, v10, v9')
    a('v_mul_u32_u24 v12, 1280, v4')
    a('v_lshl_add_u32 v12, v5, 1, v12')
    a(f'v_add_u32 v13, {CLO_OFF:#x}, v12')
    a(f'v_add_u32 v12, {CHI_OFF:#x}, v12')
    _hilo_store(a, 16, 12, 13, 24)
    a('s_branch Lp_end')
    a.label('Lp_D')
    a(f's_sub_u32 s17, s2, {B_D}')
    a('s_lshl_b32 s17, s17, 8')
    a('v_add_u32 v3, s17, v0')
    a('v_mul_u32_u24 v4, 47663, v3')
    a('v_lshrrev_b32 v4, 22, v4')
    a('v_mul_u32_u24 v5, 88, v4')
    a('v_sub_u32 v5, v3, v5')
    a('v_lshlrev_b32 v5, 3, v5')
    a('v_cmp_le_u32 vcc, 352, v5')
    a('v_subrev_u32 v6, 352, v5')
    a.nop(1)
    a('v_cndmask_b32 v6, v5, v6, vcc')
    a('v_mov_b32 v7, 160')
    a('v_cndmask_b32 v7, 0, v7, vcc')
    a('s_mov_b32 s18, 0x3acccccd')
    import struct
    N = 2048 * 640
    c1 = struct.unpack('<I', struct.pack('<f', 1.0 / N))[0]
    c2 = struct.unpack('<I', struct.pack('<f', 2.0 / N))[0]
    a(f'v_mov_b32 v14, {c2:#x}')
    a(f'v_mov_b32 v15, {c1:#x}')
    for i in range(8):
        a(f'v_add_u32 v8, {i}, v6')
        a('v_cmp_gt_u32 vcc, 321, v8')
        a.nop(2)
        a('v_cndmask_b32 v9, 0, v14, vcc')
        a('v_cmp_eq_u32 vcc, 0, v7')
        a.nop(2)
        a('v_cndmask_b32 v11, 0, v15, vcc')
        a('v_cmp_eq_u32 vcc, 0, v8')
        a.nop(2)
        a('v_cndmask_b32 v9, v9, v11, vcc')
        a('v_cmp_eq_u32 vcc, 320, v8')
        a.nop(2)
        a('v_cndmask_b32 v9, v9, v11, vcc')
        a('v_mul_u32_u24 v10, v8, v4')
        _mod640(a, 10, 11)
        a('v_add_u32 v10, v10, v7')
        a('v_cvt_f32_u32 v10, v10')
        a('v_mul_f32 v10, s18, v10')
        a('v_cos_f32 v10, v10')
        a.nop(1)
        a(f'v_mul_f32 v{16+i}, v10, v9')
    a('v_mul_u32_u24 v12, 1408, v4')
    a('v_lshl_add_u32 v12, v5, 1, v12')
    a(f'v_add_u32 v13, {DLO_OFF:#x}, v12')
    a(f'v_add_u32 v12, {DHI_OFF:#x}, v12')
    _hilo_store(a, 16, 12, 13, 24)

def gen_f1(a):
    name = 'f1_kernel'
    kernel_header(a, name)
    a('s_cmp_ge_u32 s2, 384')
    a('s_cbranch_scc1 Lf1_end')
    a(f's_load_dwordx2 s[4:5], s[0:1], {KA["ws"]}')
    a(f's_load_dwordx2 s[6:7], s[0:1], {KA["x"]}')
    a('s_waitcnt lgkmcnt(0)')
    build_srd(a, 8, 'ws', 4)
    build_srd(a, 12, 'x', 6)
    G = Gemm(a, 64, 64)
    G.setup(1280, 1280)
    G.zero_acc(0)
    a('s_lshr_b32 s16, s2, 5')
    a('s_and_b32 s17, s2, 31')
    for off in (CHI_OFF, CLO_OFF):
        a(f's_mul_i32 s28, s17, {64*1280}')
        a(f's_mul_i32 s29, s16, {64*1280}')
        a(f's_add_u32 s29, s29, {off:#x}')
        G.segment(12, 8, 28, 29, 640, 0, 35)
    vO = G.vend
    a(f'v_lshrrev_b32 v{G.vT0}, 1, v{G.vW}')
    a(f'v_lshlrev_b32 v{G.vT0}, 5, v{G.vT0}')
    a(f'v_add_u32 v{G.vT0}, v{G.vT0}, v{G.vN}')
    a(f'v_lshlrev_b32 v{vO}, 13, v{G.vT0}')
    a(f'v_and_b32 v{G.vT0}, 1, v{G.vW}')
    a(f'v_lshlrev_b32 v{G.vT0}, 7, v{G.vT0}')
    a(f'v_lshl_add_u32 v{G.vT0}, v{G.vG}, 4, v{G.vT0}')
    a(f'v_add_u32 v{vO}, v{vO}, v{G.vT0}')
    a('s_lshl_b32 s30, s16, 19')
    a('s_lshl_b32 s31, s17, 8')
    a('s_add_u32 s30, s30, s31')
    a(f's_add_u32 s30, s30, {YT_OFF:#x}')
    a(f's_mov_b32 s34, {16*8192}')
    epi_T(a, G, G.vAcc[0], 8, 30, None, 4, vO, 34)
    a.label('Lf1_end')
    a('s_endpgm')
    return name, vO + 1, G.BUF * 2

def gen_f2(a):
    name = 'f2_kernel'
    kernel_header(a, name)
    a('s_cmp_ge_u32 s2, 81')
    a('s_cbranch_scc1 Lf2_end')
    a(f's_load_dwordx2 s[4:5], s[0:1], {KA["ws"]}')
    a(f's_load_dwordx2 s[6:7], s[0:1], {KA["wr"]}')
    a(f's_load_dwordx2 s[20:21], s[0:1], {KA["wi"]}')
    a('s_waitcnt lgkmcnt(0)')
    build_srd(a, 8, 'ws', 4)
    build_srd(a, 12, 'wr', 6)
    build_srd(a, 16, 'wi', 20)
    WS = 's[8:11]'
    vN = 1; vG = 2; vF = 3; vG4 = 4; T = 6
    OP = 16
    ZB = 32
    BA = 96; BB = 160
    vend = 224
    a(f'v_and_b32 v{vN}, 15, v0')
    a(f'v_bfe_u32 v{vG}, v0, 4, 2')
    a(f'v_lshlrev_b32 v{vG4}, 2, v{vG}')
    a(f'v_lshrrev_b32 v{vF}, 6, v0')
    a('s_lshl_b32 s22, s2, 2')
    a(f'v_add_u32 v{vF}, s22, v{vF}')
    a.nop(1)
    a(f'v_readfirstlane_b32 s23, v{vF}')
    a.nop(3)
    a('s_cmp_ge_u32 s23, 321')
    a('s_cbranch_scc1 Lf2_end')
    a(f'v_lshlrev_b32 v{T}, 13, v{vF}')
    a(f'v_lshl_add_u32 v{T}, v{vG}, 8, v{T}')
    a(f'v_lshl_add_u32 v{T}, v{vN}, 2, v{T}')
    for part, base in ((0, YT_OFF), (1, YT_OFF + 384*8192)):
        a(f's_mov_b32 s24, {base:#x}')
        a(f's_mov_b32 s25, {base+4096:#x}')
        for tb in range(4):
            for ka in range(8):
                off = ka*1024 + tb*64
                so = 24 if off < 4096 else 25
                a(f'buffer_load_dword v{ZB+32*part+8*tb+ka}, v{T}, {WS}, s{so} offen offset:{off%4096}')
    def zero(bank):
        for i in range(64): a(f'v_mov_b32 v{bank+i}, 0')
    state = {'buf': 0}
    def make_op(pc, pv, qc, qv, N, sign):
        b = OP + 3*state['buf']; state['buf'] ^= 1
        a(f'v_add_u32 v{T+8}, {pc}, v{pv}')
        a(f'v_add_u32 v{T+9}, {qc}, v{qv}')
        a(f'v_mul_u32_u24 v{T+8}, v{T+8}, v{T+9}')
        a(f'v_and_b32 v{T+8}, {N-1}, v{T+8}')
        a(f'v_cvt_f32_u32 v{T+8}, v{T+8}')
        a(f'v_mul_f32 v{T+8}, {1.0/N}, v{T+8}')
        a(f'v_cos_f32 v{b}, v{T+8}')
        a(f'v_sin_f32 v{T+9}, v{T+8}')
        a.nop(1)
        if sign < 0:
            a(f'v_sub_f32 v{b+1}, 0, v{T+9}')
            a(f'v_mov_b32 v{b+2}, v{T+9}')
        else:
            a(f'v_mov_b32 v{b+1}, v{T+9}')
            a(f'v_sub_f32 v{b+2}, 0, v{T+9}')
        return b, b+1, b+2
    def mf(d, A, B):
        a(f'v_mfma_f32_16x16x4_f32 {vr(d,4)}, v{A}, v{B}, {vr(d,4)}')
    def cmac(tiles, data_is_A):
        pass
    def cgroup(items, op):
        r, i, ni = op
        for (prod_x, prod_o, tgt) in ((0, r, 0), (0, i, 1), (1, ni, 0), (1, r, 1)):
            for (dre, dim, xr, xi, xa) in items:
                x = xr if prod_x == 0 else xi
                d = dre if tgt == 0 else dim
                if xa: mf(d, x, prod_o)
                else: mf(d, prod_o, x)
    def twiddle(bank, ntile_outer, sign, bfun, cfun):
        pass
    zero(BA)
    a('s_waitcnt vmcnt(0)')
    nxt = make_op(0, vG, 0, vN, 32, -1)
    seq = [(tc, ka) for tc in range(2) for ka in range(8)]
    for si, (tc, ka) in enumerate(seq):
        op = nxt
        a.nop(1)
        items = [(BA + 4*(tb*2+tc), BA + 32 + 4*(tb*2+tc), ZB + 8*tb + ka, ZB + 32 + 8*tb + ka, True) for tb in range(4)]
        r, i, ni = op
        if si + 1 < len(seq):
            tc2, ka2 = seq[si+1]
            cgroup(items, op)
            nxt = make_op(4*ka2, vG, 16*tc2, vN, 32, -1)
        else:
            cgroup(items, op)
    a(f'v_lshlrev_b32 v{T}, 5, v{vG4}')
    a(f'v_add_u32 v{T}, v{T}, v{vN}')
    a(f'v_mul_u32_u24 v{T}, 321, v{T}')
    a(f'v_add_u32 v{T}, v{T}, v{vF}')
    a(f'v_lshlrev_b32 v{T}, 1, v{T}')
    for td in range(4):
        for tc in range(2):
            for r in range(4):
                kc = 16*tc + 32*(16*td + r)
                a(f's_mov_b32 s24, {kc*642}')
                a(f'buffer_load_ushort v{ZB + 4*(td*2+tc) + r}, v{T}, s[12:15], s24 offen')
                a(f'buffer_load_ushort v{ZB + 32 + 4*(td*2+tc) + r}, v{T}, s[16:19], s24 offen')
    a.nop(10)
    def do_twiddle(bank, sign, idx):
        for t in range(8):
            for r in range(4):
                pc, pv, qc, qv = idx(t, r)
                re = bank + 4*t + r; im = re + 32
                a(f'v_add_u32 v{T+8}, {pc}, v{pv}')
                a(f'v_add_u32 v{T+9}, {qc}, v{qv}')
                a(f'v_mul_u32_u24 v{T+8}, v{T+8}, v{T+9}')
                a(f'v_cvt_f32_u32 v{T+8}, v{T+8}')
                a(f'v_mul_f32 v{T+8}, {1.0/2048}, v{T+8}')
                a(f'v_cos_f32 v{T+2}, v{T+8}')
                a(f'v_sin_f32 v{T+3}, v{T+8}')
                a.nop(1)
                a(f'v_mul_f32 v{T+4}, v{re}, v{T+2}')
                a(f'v_mul_f32 v{T+5}, v{im}, v{T+2}')
                if sign < 0:
                    a(f'v_fma_f32 v{T+4}, v{im}, v{T+3}, v{T+4}')
                    a(f'v_fma_f32 v{im}, -v{re}, v{T+3}, v{T+5}')
                else:
                    a(f'v_fma_f32 v{T+4}, -v{im}, v{T+3}, v{T+4}')
                    a(f'v_fma_f32 v{im}, v{re}, v{T+3}, v{T+5}')
                a(f'v_mov_b32 v{re}, v{T+4}')
    do_twiddle(BA, -1, lambda t, r: (16*(t//2) + r, vG4, 16*(t%2), vN))
    zero(BB)
    seq = [(tb, r, td) for tb in range(4) for r in range(4) for td in range(4)]
    nxt = make_op(0, vN, 0, vG4, 64, -1)
    for si, (tb, r, td) in enumerate(seq):
        op = nxt
        a.nop(1)
        items = [(BB + 4*(td*2+tc), BB + 32 + 4*(td*2+tc), BA + 4*(tb*2+tc) + r, BA + 32 + 4*(tb*2+tc) + r, False) for tc in range(2)]
        cgroup(items, op)
        if si + 1 < len(seq):
            tb2, r2, td2 = seq[si+1]
            nxt = make_op(16*td2, vN, 16*tb2 + r2, vG4, 64, -1)
    a('s_waitcnt vmcnt(0)')
    a.nop(10)
    for k in range(32):
        re = BB + k; im = BB + 32 + k; wr = ZB + k; wi = ZB + 32 + k
        a(f'v_lshlrev_b32 v{wr}, 16, v{wr}')
        a(f'v_lshlrev_b32 v{wi}, 16, v{wi}')
        a(f'v_mul_f32 v{T+4}, v{re}, v{wr}')
        a(f'v_mul_f32 v{T+5}, v{im}, v{wr}')
        a(f'v_fma_f32 v{T+4}, -v{im}, v{wi}, v{T+4}')
        a(f'v_fma_f32 v{im}, v{re}, v{wi}, v{T+5}')
        a(f'v_mov_b32 v{re}, v{T+4}')
    zero(BA)
    seq = [(td, r, tb) for td in range(4) for r in range(4) for tb in range(4)]
    nxt = make_op(0, vG4, 0, vN, 64, +1)
    for si, (td, r, tb) in enumerate(seq):
        op = nxt
        a.nop(1)
        items = [(BA + 4*(tc*4+tb), BA + 32 + 4*(tc*4+tb), BB + 4*(td*2+tc) + r, BB + 32 + 4*(td*2+tc) + r, True) for tc in range(2)]
        cgroup(items, op)
        if si + 1 < len(seq):
            td2, r2, tb2 = seq[si+1]
            nxt = make_op(16*td2 + r2, vG4, 16*tb2, vN, 64, +1)
    a.nop(10)
    do_twiddle(BA, +1, lambda t, r: (16*(t//4) + r, vG4, 16*(t%4), vN))
    zero(BB)
    seq = [(tc, r, ta) for tc in range(2) for r in range(4) for ta in range(2)]
    nxt = make_op(0, vN, 0, vG4, 32, +1)
    for si, (tc, r, ta) in enumerate(seq):
        op = nxt
        a.nop(1)
        items = [(BB + 4*(ta*4+tb), BB + 32 + 4*(ta*4+tb), BA + 4*(tc*4+tb) + r, BA + 32 + 4*(tc*4+tb) + r, False) for tb in range(4)]
        cgroup(items, op)
        if si + 1 < len(seq):
            tc2, r2, ta2 = seq[si+1]
            nxt = make_op(16*ta2, vN, 16*tc2 + r2, vG4, 32, +1)
    a.nop(10)
    a(f'v_lshlrev_b32 v{T}, 6, v{vG4}')
    a(f'v_add_u32 v{T}, v{T}, v{vN}')
    a(f'v_mul_u32_u24 v{T}, 1408, v{T}')
    a(f'v_lshl_add_u32 v{T}, v{vF}, 1, v{T}')
    for ta in range(2):
        for tb in range(4):
            for r in range(4):
                sc = 64*(16*ta + r) + 16*tb
                for part in range(2):
                    x = BB + 32*part + 4*(ta*4+tb) + r
                    a(f'v_cvt_pk_bf16_f32 v{T+2}, v{x}, v{x}')
                    a(f'v_lshlrev_b32 v{T+3}, 16, v{T+2}')
                    a(f'v_sub_f32 v{T+3}, v{x}, v{T+3}')
                    a(f'v_cvt_pk_bf16_f32 v{x}, v{T+3}, v{T+3}')
                    a(f's_mov_b32 s24, {ZHI_OFF + sc*1408:#x}')
                    a(f's_mov_b32 s25, {ZLO_OFF + sc*1408:#x}')
                    tt = T + 4 + (part + 2*r) % 4
                    a(f'v_mov_b32 v{tt}, v{T+2}')
                    a(f'buffer_store_short v{tt}, v{T}, {WS}, s24 offen offset:{704*part}')
                    a(f'buffer_store_short v{x}, v{T}, {WS}, s25 offen offset:{704*part}')
    a.label('Lf2_end')
    a('s_endpgm')
    return name, vend, 0, 81
```

```python
from emit import *
from gemm import Gemm

def gen_fin(a, with_fft=True):
    name = 'fin_kernel'
    kernel_header(a, name)
    a('s_cmp_ge_u32 s2, 320')
    a('s_cbranch_scc1 Lf_end')
    a(f's_load_dwordx2 s[4:5], s[0:1], {KA["ws"]}')
    a(f's_load_dwordx2 s[6:7], s[0:1], {KA["out"]}')
    a('s_waitcnt lgkmcnt(0)')
    build_srd(a, 8, 'ws', 4)
    build_srd(a, 12, 'out', 6)
    G = Gemm(a, 64, 64, nacc=2)
    G.setup(8192, 8192)
    G.zero_acc(0); G.zero_acc(1)
    a('s_mul_i32 s16, s2, 6554')
    a('s_lshr_b32 s16, s16, 16')
    a('s_mul_i32 s17, s16, 10')
    a('s_sub_u32 s17, s2, s17')
    a('s_lshl_b32 s28, s17, 19')
    a(f's_add_u32 s28, s28, {WOT_OFF:#x}')
    a('s_lshl_b32 s29, s16, 19')
    a(f's_add_u32 s29, s29, {O_OFF:#x}')
    G.segment(8, 8, 28, 29, 4096, 1, 35)
    if with_fft:
        G.set_ld(1408, 1408)
        for (po, qo) in ((DHI_OFF, ZHI_OFF), (DLO_OFF, ZHI_OFF), (DHI_OFF, ZLO_OFF)):
            a(f's_mul_i32 s28, s17, {64*1408}')
            a(f's_add_u32 s28, s28, {po:#x}')
            a(f's_mul_i32 s29, s16, {64*1408}')
            a(f's_add_u32 s29, s29, {qo:#x}')
            G.segment(8, 8, 28, 29, 704, 0, 35)
    vO = G.vend; vGt = G.vend + 1; vg = G.vend + 2
    a(f'v_lshrrev_b32 v{G.vT0}, 1, v{G.vW}')
    a(f'v_lshlrev_b32 v{G.vT0}, 5, v{G.vT0}')
    a(f'v_add_u32 v{G.vT0}, v{G.vT0}, v{G.vN}')
    a('s_lshl_b32 s18, s16, 6')
    a(f'v_add_u32 v{G.vT0}, s18, v{G.vT0}')
    a(f'v_lshlrev_b32 v{vGt}, 2, v{G.vT0}')
    a(f'v_add_u32 v{vGt}, {G_OFF:#x}, v{vGt}')
    a(f'buffer_load_dword v{vg}, v{vGt}, s[8:11], 0 offen')
    a(f'buffer_load_dword v{vg+1}, v{vGt}, s[8:11], 0 offen offset:64')
    a(f'v_mul_u32_u24 v{vO}, 1280, v{G.vT0}')
    a(f'v_and_b32 v{G.vT0}, 1, v{G.vW}')
    a(f'v_lshlrev_b32 v{G.vT0}, 6, v{G.vT0}')
    a(f'v_lshl_add_u32 v{G.vT0}, v{G.vG}, 3, v{G.vT0}')
    a(f'v_add_u32 v{vO}, v{vO}, v{G.vT0}')
    a('s_lshl_b32 s18, s17, 7')
    a(f'v_add_u32 v{vO}, s18, v{vO}')
    a('s_waitcnt vmcnt(0)')
    for tq in range(2):
        a(f'v_sub_f32 v{vg+2+tq}, 1.0, v{vg+tq}')
        a(f'v_cvt_pk_bf16_f32 v{vg+2+tq}, v{vg+2+tq}, v{vg+2+tq}')
        a(f'v_lshlrev_b32 v{vg+2+tq}, 16, v{vg+2+tq}')
    a('s_mov_b32 s19, 0')
    t = G.vStg
    def rnd2(x, y):
        a(f'v_cvt_pk_bf16_f32 v{t+6}, v{x}, v{y}')
        a(f'v_lshlrev_b32 v{x}, 16, v{t+6}')
        a(f'v_and_b32 v{y}, 0xffff0000, v{t+6}')
    for tq in range(2):
        for tp in range(2):
            da = G.vAcc[0] + 4*(tp*2+tq); db = G.vAcc[1] + 4*(tp*2+tq)
            for k in (0, 2):
                rnd2(da+k, da+k+1); rnd2(db+k, db+k+1)
                for kk in (k, k+1):
                    a(f'v_mul_f32 v{da+kk}, v{vg+tq}, v{da+kk}')
                    a(f'v_mul_f32 v{db+kk}, v{vg+2+tq}, v{db+kk}')
                rnd2(da+k, da+k+1); rnd2(db+k, db+k+1)
                for kk in (k, k+1):
                    a(f'v_add_f32 v{da+kk}, v{da+kk}, v{db+kk}')
            tt = t + 2*((tq*2+tp) % 2)
            a(f'v_cvt_pk_bf16_f32 v{tt}, v{da}, v{da+1}')
            a(f'v_cvt_pk_bf16_f32 v{tt+1}, v{da+2}, v{da+3}')
            a(f'buffer_store_dwordx2 {vr(tt,2)}, v{vO}, s[12:15], s19 offen offset:{32*tp}')
        a(f's_add_u32 s19, s19, {16*1280}')
    a.label('Lf_end')
    a('s_endpgm')
    return name, vg + 4, G.BUF * 2
```

```python
from emit import *

N_T1 = 480
N_T2 = 160
FILL_BYTES = FILL_END - (MEMF_OFF + 10240)
N_FILL = (FILL_BYTES + 65535) // 65536
N_C = 240
N_D = 220
N_G = 64
B_T2 = N_T1
B_FILL = B_T2 + N_T2
B_C = B_FILL + N_FILL
B_D = B_C + N_C
B_G = B_D + N_D
B_M = B_G + N_G
B_Z = B_M + 1
N_Z = 96
N_PREP = B_Z + N_Z

def canon(a, v, tmp_s):
    a(f'v_cmp_eq_u32 vcc, -1, v{v}')
    a.nop(2)
    a(f'v_cndmask_b32 v{v}, v{v}, v{tmp_s}, vcc')

def gen_prep(a):
    name = 'prep_kernel'
    kernel_header(a, name)
    a(f's_cmp_ge_u32 s2, {N_PREP}')
    a('s_cbranch_scc1 Lp_end')
    a(f's_load_dwordx2 s[4:5], s[0:1], {KA["ws"]}')
    a(f's_load_dwordx2 s[40:41], s[0:1], {KA["wq"]}')
    a(f's_load_dwordx2 s[42:43], s[0:1], {KA["wk"]}')
    a(f's_load_dwordx2 s[44:45], s[0:1], {KA["wv"]}')
    a(f's_load_dwordx2 s[46:47], s[0:1], {KA["wo"]}')
    a(f's_load_dwordx2 s[48:49], s[0:1], {KA["x"]}')
    a(f's_load_dwordx2 s[50:51], s[0:1], {KA["gate"]}')
    a(f's_load_dwordx2 s[52:53], s[0:1], {KA["mem0"]}')
    a('s_waitcnt lgkmcnt(0)')
    build_srd(a, 8, 'ws', 4)
    a('v_and_b32 v1, 63, v0')
    a('v_lshrrev_b32 v2, 6, v0')
    a(f's_cmp_ge_u32 s2, {B_FILL}')
    a('s_cbranch_scc1 Lp_notT')
    a(f's_cmp_ge_u32 s2, {B_T2}')
    a('s_cbranch_scc1 Lp_T2')
    a('s_mov_b32 s16, 0')
    a('s_mov_b32 s17, s2')
    a('s_mov_b32 s12, s40'); a('s_mov_b32 s13, s41')
    a('s_cmp_ge_u32 s2, 160')
    a('s_cbranch_scc0 Lp_T1a')
    a('s_mov_b32 s16, 1'); a('s_sub_u32 s17, s2, 160'); a('s_mov_b32 s12, s42'); a('s_mov_b32 s13, s43')
    a('s_cmp_ge_u32 s2, 320')
    a('s_cbranch_scc0 Lp_T1a')
    a('s_mov_b32 s16, 2'); a('s_sub_u32 s17, s2, 320'); a('s_mov_b32 s12, s44'); a('s_mov_b32 s13, s45')
    a.label('Lp_T1a')
    a('s_and_b32 s13, s13, 0xffff')
    a(f's_mov_b32 s14, {SIZES["wq"]:#x}')
    a('s_mov_b32 s15, 0x00020000')
    a('s_lshr_b32 s18, s17, 3')
    a('s_and_b32 s19, s17, 7')
    a('s_lshl_b32 s19, s19, 2')
    a('v_add_u32 v3, s19, v2')
    a('v_lshlrev_b32 v4, 8, v3')
    a('v_lshl_add_u32 v4, v1, 2, v4')
    a('s_lshl_b32 s20, s18, 18')
    a('s_mov_b32 s21, 8192')
    a('s_lshl_b32 s22, s16, 12')
    a('v_lshlrev_b32 v5, 7, v3')
    a('v_lshl_add_u32 v5, v1, 1, v5')
    a('v_add_u32 v5, s22, v5')
    a('v_mul_u32_u24 v5, 1280, v5')
    a('s_lshl_b32 s22, s18, 6')
    a(f's_add_u32 s22, s22, {WT_OFF:#x}')
    a('v_add_u32 v5, s22, v5')
    a('v_add_u32 v6, 1280, v5')
    a('s_branch Lp_Tgo')
    a.label('Lp_T2')
    a('s_mov_b32 s12, s46'); a('s_and_b32 s13, s47, 0xffff')
    a(f's_mov_b32 s14, {SIZES["wo"]:#x}')
    a('s_mov_b32 s15, 0x00020000')
    a(f's_sub_u32 s17, s2, {B_T2}')
    a('s_lshl_b32 s17, s17, 2')
    a('v_add_u32 v3, s17, v2')
    a('v_lshrrev_b32 v7, 7, v3')
    a('v_and_b32 v8, 127, v3')
    a('v_mul_u32_u24 v4, 40960, v8')
    a('v_lshl_add_u32 v4, v7, 8, v4')
    a('v_lshl_add_u32 v4, v1, 2, v4')
    a('s_mov_b32 s20, 0')
    a('s_mov_b32 s21, 1280')
    a('v_lshlrev_b32 v5, 7, v7')
    a('v_lshl_add_u32 v5, v1, 1, v5')
    a('v_lshlrev_b32 v5, 13, v5')
    a('v_lshl_add_u32 v5, v8, 6, v5')
    a(f'v_add_u32 v5, {WOT_OFF:#x}, v5')
    a('v_add_u32 v6, 8192, v5')
    a.label('Lp_Tgo')
    for i in range(32):
        a(f'buffer_load_dword v{16+i}, v4, s[12:15], s20 offen')
        a('s_add_u32 s20, s20, s21')
    a('s_mov_b32 s23, 0x05040100')
    a('s_mov_b32 s24, 0x07060302')
    a('s_waitcnt vmcnt(0)')
    for q in range(4):
        for p in range(4):
            r0 = 16 + 8*q + 2*p
            a(f'v_perm_b32 v{48+8*q+p}, v{r0+1}, v{r0}, s23')
            a(f'v_perm_b32 v{48+8*q+4+p}, v{r0+1}, v{r0}, s24')
    for q in range(4):
        a(f'buffer_store_dwordx4 v[{48+8*q}:{48+8*q+3}], v5, s[8:11], 0 offen offset:{16*q}')
        a(f'buffer_store_dwordx4 v[{48+8*q+4}:{48+8*q+7}], v6, s[8:11], 0 offen offset:{16*q}')
    a('s_branch Lp_end')
    a.label('Lp_notT')
    a(f's_cmp_ge_u32 s2, {B_C}')
    a('s_cbranch_scc1 Lp_notF')
    a('s_mov_b32 s12, s8'); a('s_mov_b32 s13, s9'); a(f's_mov_b32 s14, {FILL_END:#x}'); a('s_mov_b32 s15, 0x00020000')
    a(f's_sub_u32 s17, s2, {B_FILL}')
    a('s_lshl_b32 s17, s17, 16')
    a(f's_add_u32 s17, s17, {MEMF_OFF+10240:#x}')
    a('v_lshlrev_b32 v4, 4, v0')
    for i in range(4):
        a(f'v_mov_b32 v{8+i}, -1')
    for i in range(16):
        a(f'buffer_store_dwordx4 v[8:11], v4, s[12:15], s17 offen')
        a('s_add_u32 s17, s17, 4096')
    a('s_branch Lp_end')
    a.label('Lp_notF')
    a(f's_cmp_ge_u32 s2, {B_G}')
    a('s_cbranch_scc1 Lp_notCD')
    gen_dft_jobs(a)
    a('s_branch Lp_end')
    a.label('Lp_notCD')
    a(f's_cmp_ge_u32 s2, {B_M}')
    a('s_cbranch_scc1 Lp_M')
    gen_gate(a)
    a('s_branch Lp_end')
    a.label('Lp_M')
    a(f's_cmp_ge_u32 s2, {B_Z}')
    a('s_cbranch_scc0 Lp_M2')
    a(f's_sub_u32 s17, s2, {B_Z}')
    a('s_lshl_b32 s17, s17, 16')
    a(f's_add_u32 s17, s17, {ZHI_OFF:#x}')
    a('v_lshlrev_b32 v4, 4, v0')
    for i in range(4):
        a(f'v_mov_b32 v{8+i}, 0')
    for i in range(16):
        a(f'buffer_store_dwordx4 v[8:11], v4, s[8:11], s17 offen')
        a('s_add_u32 s17, s17, 4096')
    a('s_branch Lp_end')
    a.label('Lp_M2')
    a('s_mov_b32 s12, s52'); a('s_and_b32 s13, s53, 0xffff'); a(f's_mov_b32 s14, {SIZES["mem0"]:#x}'); a('s_mov_b32 s15, 0x00020000')
    a('v_mov_b32 v20, 0x7fc07fc0')
    for it in range(3):
        a(f'v_add_u32 v3, {256*it}, v0')
        a('v_and_b32 v4, 7, v3')
        a('v_mul_u32_u24 v4, 1280, v4')
        a('v_lshrrev_b32 v5, 3, v3')
        a('v_lshl_add_u32 v4, v5, 4, v4')
        a('v_lshlrev_b32 v5, 4, v3')
        a(f'v_add_u32 v5, {MEMF_OFF:#x}, v5')
        a('v_cmp_gt_u32 vcc, 640, v3')
        a('s_and_saveexec_b64 s[30:31], vcc')
        lab = a.newlabel('Lp_Ms')
        a(f's_cbranch_execz {lab}')
        a('buffer_load_dwordx4 v[8:11], v4, s[12:15], 0 offen')
        a('s_waitcnt vmcnt(0)')
        for i in range(4):
            canon(a, 8+i, 20)
        a('buffer_store_dwordx4 v[8:11], v5, s[8:11], 0 offen')
        a('s_waitcnt vmcnt(0)')
        a.label(lab)
        a('s_mov_b64 exec, s[30:31]')
    a.label('Lp_end')
    a('s_endpgm')
    return name, 96

def wave_sum(a, v, t):
    for r in (1, 2, 4, 8):
        a.nop(2)
        a(f'v_add_f32_dpp v{v}, v{v}, v{v} row_ror:{r} row_mask:0xf bank_mask:0xf')
    a(f'v_mov_b32 v{t}, v{v}')
    a.nop(2)
    a(f'v_permlane16_swap_b32 v{v}, v{t}')
    a.nop(1)
    a(f'v_add_f32 v{v}, v{v}, v{t}')
    a(f'v_mov_b32 v{t}, v{v}')
    a.nop(2)
    a(f'v_permlane32_swap_b32 v{v}, v{t}')
    a.nop(1)
    a(f'v_add_f32 v{v}, v{v}, v{t}')

def gen_gate(a):
    a('s_mov_b32 s12, s48'); a('s_and_b32 s13, s49, 0xffff'); a(f's_mov_b32 s14, {SIZES["x"]:#x}'); a('s_mov_b32 s15, 0x00020000')
    a('s_mov_b32 s16, s50'); a('s_and_b32 s17, s51, 0xffff'); a(f's_mov_b32 s18, {SIZES["gate"]:#x}'); a('s_mov_b32 s19, 0x00020000')
    a('v_mul_u32_u24 v3, 20, v1')
    a('buffer_load_dwordx4 v[8:11], v3, s[16:19], 0 offen')
    a('buffer_load_dword v12, v3, s[16:19], 0 offen offset:16')
    a(f's_sub_u32 s20, s2, {B_G}')
    a('s_lshl_b32 s20, s20, 2')
    a('v_add_u32 v4, s20, v2')
    a('v_lshlrev_b32 v4, 3, v4')
    a('v_mul_u32_u24 v5, 1280, v4')
    a('v_add_u32 v5, v5, v3')
    a('v_lshlrev_b32 v6, 2, v4')
    a(f'v_add_u32 v6, {G_OFF:#x}, v6')
    a('s_waitcnt vmcnt(0)')
    for i in range(5):
        a(f'v_lshlrev_b32 v{20+2*i}, 16, v{8+i}')
        a(f'v_and_b32 v{21+2*i}, 0xffff0000, v{8+i}')
    a('s_mov_b32 s21, 0x3fb8aa3b')
    for t in range(8):
        a(f'buffer_load_dwordx4 v[32:35], v5, s[12:15], 0 offen')
        a(f'buffer_load_dword v36, v5, s[12:15], 0 offen offset:16')
        a('v_add_u32 v5, 1280, v5')
        a('v_mov_b32 v40, 0')
        a('s_waitcnt vmcnt(0)')
        for i in range(5):
            a(f'v_lshlrev_b32 v41, 16, v{32+i}')
            a(f'v_and_b32 v42, 0xffff0000, v{32+i}')
            a(f'v_mul_f32 v41, v41, v{20+2*i}')
            a(f'v_mul_f32 v42, v42, v{21+2*i}')
            a('v_cvt_pk_bf16_f32 v43, v41, v42')
            a('v_lshlrev_b32 v41, 16, v43')
            a('v_and_b32 v42, 0xffff0000, v43')
            a('v_add_f32 v40, v40, v41')
            a('v_add_f32 v40, v40, v42')
        wave_sum(a, 40, 41)
        a('v_cvt_pk_bf16_f32 v40, v40, v40')
        a('v_lshlrev_b32 v40, 16, v40')
        a('v_mul_f32 v41, s21, v40')
        a('v_sub_f32 v41, 0, v41')
        a('v_exp_f32 v41, v41')
        a.nop(1)
        a('v_add_f32 v41, 1.0, v41')
        a('v_rcp_f32 v41, v41')
        a.nop(1)
        a('v_cvt_pk_bf16_f32 v41, v41, v41')
        a('v_lshlrev_b32 v41, 16, v41')
        a('s_mov_b64 s[30:31], exec')
        a('s_mov_b64 exec, 1')
        a(f'buffer_store_dword v41, v6, s[8:11], 0 offen offset:{4*t}')
        a('s_mov_b64 exec, s[30:31]')

def gen_dft_jobs(a):
    from k_fft import gen_dft_matrices
    gen_dft_matrices(a)
```

```python
from emit import *
from gemm import Gemm

def epi_T(a, G, acc, sOut, sOo, ldo_list, esz, vO, sTmp):
    a.nop(10)
    for tq in range(G.TQ):
        for tp in range(G.TP):
            d = acc + 4 * (tp * G.TQ + tq)
            if esz == 2:
                t = G.vStg + 2 * ((tq * G.TP + tp) % 8)
                a(f'v_cvt_pk_bf16_f32 v{t}, v{d}, v{d+1}')
                a(f'v_cvt_pk_bf16_f32 v{t+1}, v{d+2}, v{d+3}')
                a(f'buffer_store_dwordx2 {vr(t,2)}, v{vO}, {sr(sOut,4)}, s{sOo} offen offset:{32*tp}')
            else:
                a(f'buffer_store_dwordx4 {vr(d,4)}, v{vO}, {sr(sOut,4)}, s{sOo} offen offset:{64*tp}')
        if tq != G.TQ - 1:
            a(f's_add_u32 s{sOo}, s{sOo}, s{sTmp}')

def gen_qkv(a):
    name = 'qkv_kernel'
    kernel_header(a, name)
    a('s_cmp_ge_u32 s2, 1536')
    a('s_cbranch_scc1 Lq_end')
    a(f's_load_dwordx2 s[4:5], s[0:1], {KA["ws"]}')
    a(f's_load_dwordx2 s[6:7], s[0:1], {KA["x"]}')
    a('s_waitcnt lgkmcnt(0)')
    build_srd(a, 8, 'ws', 4)
    build_srd(a, 12, 'x', 6)
    G = Gemm(a, 128, 128)
    G.setup(1280, 1280)
    G.zero_acc(0)
    a('s_lshr_b32 s16, s2, 4')
    a('s_and_b32 s17, s2, 15')
    a('s_mul_i32 s18, s16, 163840')
    a(f's_add_u32 s18, s18, {WT_OFF:#x}')
    a('s_mul_i32 s19, s17, 163840')
    a('s_cmp_lt_u32 s16, 64')
    for i in range(4):
        a(f's_cselect_b32 s{20+i}, s{8+i}, s{12+i}')
        a(f's_cselect_b32 s{24+i}, s{12+i}, s{8+i}')
    a('s_cselect_b32 s28, s18, s19')
    a('s_cselect_b32 s29, s19, s18')
    a('s_lshl_b32 s30, s17, 21')
    a('s_lshl_b32 s31, s16, 8')
    a('s_add_u32 s30, s30, s31')
    a(f's_add_u32 s30, s30, {QK_OFF:#x}')
    a('s_sub_u32 s31, s16, 64')
    a('s_lshl_b32 s31, s31, 19')
    a('s_lshl_b32 s32, s17, 8')
    a('s_add_u32 s31, s31, s32')
    a(f's_add_u32 s31, s31, {VT_OFF:#x}')
    a('s_cselect_b32 s30, s30, s31')
    return_fix = len(a.lines)
    a.lines.pop()
    a('s_cmp_lt_u32 s16, 64')
    a('s_cselect_b32 s30, s30, s31')
    a('s_cselect_b32 s33, 14, 12')
    vO = G.vend
    a(f'v_lshrrev_b32 v{G.vT0}, 1, v{G.vW}')
    a(f'v_lshlrev_b32 v{G.vT0}, 6, v{G.vT0}')
    a(f'v_add_u32 v{G.vT0}, v{G.vT0}, v{G.vN}')
    a(f'v_lshlrev_b32 v{vO}, s33, v{G.vT0}')
    a(f'v_and_b32 v{G.vT0}, 1, v{G.vW}')
    a(f'v_lshlrev_b32 v{G.vT0}, 7, v{G.vT0}')
    a(f'v_lshl_add_u32 v{G.vT0}, v{G.vG}, 3, v{G.vT0}')
    a(f'v_add_u32 v{vO}, v{vO}, v{G.vT0}')
    a('s_lshl_b32 s34, 16, s33')
    G.segment(20, 24, 28, 29, 640, 0, 35)
    epi_T(a, G, G.vAcc[0], 8, 30, None, 2, vO, 34)
    a.label('Lq_end')
    a('s_endpgm')
    return name, vO + 1, G.BUF * 2
```

```python
from emit import *

SPIN_MAX = 2000000

def gen_rec(a):
    name = 'rec_kernel'
    kernel_header(a, name)
    a('s_cmp_ge_u32 s2, 256')
    a('s_cbranch_scc1 Lr_end')
    a(f's_load_dwordx2 s[4:5], s[0:1], {KA["ws"]}')
    a('s_waitcnt lgkmcnt(0)')
    build_srd(a, 8, 'ws', 4)
    WS = 's[8:11]'
    a('s_and_b32 s12, s2, 7')
    a('s_lshr_b32 s13, s2, 3')
    a('s_lshl_b32 s14, s12, 2')
    a('s_lshr_b32 s15, s13, 3')
    a('s_add_u32 s14, s14, s15')
    a('s_and_b32 s15, s13, 7')
    sH, sJ = 14, 15
    v = 1
    def alloc(n, al=1):
        nonlocal v
        v = (v + al - 1) // al * al
        r = v; v += n; return r
    vL = alloc(1); vW = alloc(1); vN = alloc(1); vG = alloc(1)
    vT = alloc(8, 2)
    vMemOff = alloc(1); vProbe1 = alloc(1); vQkOff = alloc(1); vVmOff = alloc(1)
    vStQ = alloc(1); vStP = alloc(1); vRedOff = alloc(1); vStM = alloc(1)
    vKxOff = alloc(1); vVxOff = alloc(1)
    vLw = alloc(1)
    vLr1 = alloc(1); vLr2 = alloc(1); vLr3 = alloc(1)
    vCan = alloc(1)
    vWq = alloc(20, 4); vWk = alloc(20, 4); vWv = alloc(20, 4); vWo = alloc(20, 4)
    vM = alloc(20, 4)
    vQB = alloc(4, 4); vKM = alloc(4, 4); vVM = alloc(4, 2)
    vKX = alloc(8, 4); vVX = alloc(8, 4)
    vS = alloc(12, 4)
    vAq, vAk, vAv = vS, vS+4, vS+8
    vR = alloc(48, 4)
    vPBx = alloc(4, 4); vPBm = alloc(2, 2)
    vO = alloc(8, 4); vOB = alloc(4, 4)
    vP = vM
    vend = v
    T = vT
    a(f'v_and_b32 v{vL}, 63, v0')
    a(f'v_lshrrev_b32 v{vW}, 6, v0')
    a(f'v_and_b32 v{vN}, 15, v0')
    a(f'v_bfe_u32 v{vG}, v0, 4, 2')
    a(f'v_mov_b32 v{vCan}, 0x7fc07fc0')
    a.nop(1)
    a(f'v_readfirstlane_b32 s16, v{vW}')
    sWv = 16
    a(f'v_and_b32 v{T}, 7, v{vN}')
    a(f'v_lshl_add_u32 v{T}, v{vG}, 3, v{T}')
    a(f'v_lshlrev_b32 v{T}, 4, v{T}')
    a(f'v_mul_u32_u24 v{T+1}, 2560, v{vW}')
    a(f'v_add_u32 v{vMemOff}, v{T}, v{T+1}')
    a(f'v_add_u32 v{vMemOff}, {MEMF_OFF:#x}, v{vMemOff}')
    a(f'v_add_u32 v{vProbe1}, {MEMF_OFF+2560-4:#x}, v{T+1}')
    a(f's_mul_i32 s17, s{sH}, 6144')
    a(f's_add_u32 s17, s17, {QKVM_OFF:#x}')
    a(f'v_lshlrev_b32 v{T+1}, 9, v{vW}')
    a(f'v_add_u32 v{vQkOff}, v{T}, v{T+1}')
    a(f'v_add_u32 v{vQkOff}, s17, v{vQkOff}')
    a(f'v_and_b32 v{T+2}, 31, v{vL}')
    a(f'v_lshlrev_b32 v{T+2}, 3, v{T+2}')
    a(f'v_add_u32 v{vVmOff}, v{T+1}, v{T+2}')
    a(f'v_add_u32 v{vVmOff}, s17, v{vVmOff}')
    a(f'v_add_u32 v{vVmOff}, 4096, v{vVmOff}')
    a(f's_lshl_b32 s18, s{sJ}, 8')
    a('s_add_u32 s18, s18, s17')
    a(f'v_lshlrev_b32 v{vStQ}, 11, v{vW}')
    a(f'v_add_u32 v{vStQ}, v{vStQ}, v{T+2}')
    a(f'v_add_u32 v{vStQ}, s18, v{vStQ}')
    a(f's_mul_i32 s18, s{sH}, 20480')
    a(f's_mul_i32 s19, s{sJ}, 2560')
    a('s_add_u32 s18, s18, s19')
    a(f's_add_u32 s18, s18, {PART_OFF:#x}')
    a(f'v_lshlrev_b32 v{vStP}, 4, v0')
    a(f'v_add_u32 v{vStP}, s18, v{vStP}')
    a('s_mul_i32 s18, s2, 171')
    a('s_lshr_b32 s18, s18, 9')
    a('s_mul_i32 s19, s18, 3')
    a('s_sub_u32 s19, s2, s19')
    a('s_mov_b32 s20, 0')
    a('s_cmp_eq_u32 s19, 0')
    a('s_cselect_b32 s20, 1, 0')
    a('s_cmp_lt_u32 s18, 80')
    a('s_cselect_b32 s20, s20, 0')
    a(f's_cmp_eq_u32 s{sWv}, 3')
    a('s_cselect_b32 s20, s20, 0')
    sRed = 20
    a(f'v_mul_u32_u24 v{vRedOff}, 20480, v{vG}')
    a(f'v_lshl_add_u32 v{vRedOff}, v{vN}, 4, v{vRedOff}')
    a('s_lshl_b32 s19, s18, 8')
    a(f's_add_u32 s19, s19, {PART_OFF:#x}')
    a(f'v_add_u32 v{vRedOff}, s19, v{vRedOff}')
    a(f'v_and_b32 v{T+1}, 7, v{vN}')
    a(f'v_lshlrev_b32 v{T+1}, 4, v{T+1}')
    a(f'v_lshrrev_b32 v{T+2}, 3, v{vN}')
    a(f'v_lshl_add_u32 v{vStM}, v{T+2}, 3, v{T+1}')
    a('s_lshl_b32 s19, s18, 7')
    a(f's_add_u32 s19, s19, {MEMF_OFF+10240:#x}')
    a(f'v_add_u32 v{vStM}, s19, v{vStM}')
    a(f'v_lshlrev_b32 v{vKxOff}, 14, v{vN}')
    a(f'v_lshl_add_u32 v{vKxOff}, v{vW}, 6, v{vKxOff}')
    a(f'v_lshl_add_u32 v{vKxOff}, v{vG}, 4, v{vKxOff}')
    a(f's_lshl_b32 s19, s{sH}, 8')
    a(f's_add_u32 s19, s19, {QK_OFF+8192:#x}')
    a(f'v_add_u32 v{vKxOff}, s19, v{vKxOff}')
    a(f'v_lshl_add_u32 v{T+1}, v{vW}, 5, v{vN}')
    a(f'v_lshlrev_b32 v{vVxOff}, 12, v{T+1}')
    a(f'v_lshl_add_u32 v{vVxOff}, v{vG}, 3, v{vVxOff}')
    a(f's_lshl_b32 s19, s{sH}, 19')
    a(f's_add_u32 s19, s19, {VT_OFF:#x}')
    a(f'v_add_u32 v{vVxOff}, s19, v{vVxOff}')
    R1, R2, R3 = 0, 12288, 24576
    a(f'v_lshlrev_b32 v{vLw}, 4, v{vL}')
    a(f'v_and_b32 v{T+1}, 1, v{vL}')
    a(f'v_bfe_u32 v{T+2}, v{vL}, 1, 3')
    a(f'v_bfe_u32 v{T+3}, v{vL}, 4, 1')
    a(f'v_lshl_add_u32 v{T+3}, v{T+3}, 1, v{T+1}')
    a(f'v_lshl_add_u32 v{T+3}, v{T+3}, 4, v{T+2}')
    a(f'v_cmp_eq_u32 vcc, 2, v{vW}')
    a.nop(2)
    a(f'v_cndmask_b32 v{T+3}, v{T+3}, v{vL}, vcc')
    a(f'v_lshlrev_b32 v{T+3}, 4, v{T+3}')
    a(f'v_lshl_add_u32 v{vLr1}, v{vW}, 10, v{T+3}')
    a(f'v_add_u32 v{vLr2}, {R2}, v{vLw}')
    a(f'v_lshrrev_b32 v{T+1}, 5, v0')
    a(f'v_and_b32 v{T+2}, 7, v0')
    a(f'v_bfe_u32 v{T+3}, v0, 3, 2')
    a(f'v_lshl_add_u32 v{T+3}, v{T+3}, 4, v{T+2}')
    a(f'v_lshlrev_b32 v{T+3}, 4, v{T+3}')
    a(f'v_lshl_add_u32 v{vLr3}, v{T+1}, 10, v{T+3}')
    a(f'v_add_u32 v{vLr3}, {R3}, v{vLr3}')
    vLw1 = vend; vLw2 = vend + 1; vLw3 = vend + 2; vend += 3
    a(f'v_mul_u32_u24 v{T+1}, 3072, v{vW}')
    a(f'v_add_u32 v{vLw1}, v{vLw}, v{T+1}')
    a(f'v_add_u32 v{vLw2}, {R2}, v{vLw1}')
    a(f'v_mul_u32_u24 v{T+1}, 5120, v{vW}')
    a(f'v_add_u32 v{vLw3}, v{vLw}, v{T+1}')
    a(f'v_add_u32 v{vLw3}, {R3}, v{vLw3}')
    a(f's_lshl_b32 s19, s{sH}, 7')
    a(f's_lshl_b32 s21, s{sJ}, 4')
    a('s_add_u32 s19, s19, s21')
    a(f'v_add_u32 v{T+1}, s19, v{vN}')
    a(f'v_mul_u32_u24 v{T+1}, 1280, v{T+1}')
    a(f'v_mul_u32_u24 v{T+2}, 320, v{vW}')
    a(f'v_add_u32 v{T+1}, v{T+1}, v{T+2}')
    a(f'v_lshl_add_u32 v{T+1}, v{vG}, 4, v{T+1}')
    for wi, base in enumerate((vWq, vWk, vWv)):
        a(f's_mov_b32 s19, {WT_OFF + wi*4096*1280:#x}')
        for t in range(5):
            a(f'buffer_load_dwordx4 {vr(base+4*t,4)}, v{T+1}, {WS}, s19 offen offset:{64*t}')
    a(f's_mul_i32 s19, s{sJ}, 80')
    a(f'v_add_u32 v{T+1}, s19, v{vN}')
    a(f'v_lshlrev_b32 v{T+1}, 13, v{T+1}')
    a(f'v_lshl_add_u32 v{T+1}, v{vW}, 6, v{T+1}')
    a(f'v_lshl_add_u32 v{T+1}, v{vG}, 3, v{T+1}')
    a(f's_lshl_b32 s19, s{sH}, 8')
    a(f's_add_u32 s19, s19, {WOT_OFF:#x}')
    for t in range(5):
        a(f'buffer_load_dwordx2 {vr(vWo+4*t,2)}, v{T+1}, {WS}, s19 offen')
        a(f'buffer_load_dwordx2 {vr(vWo+4*t+2,2)}, v{T+1}, {WS}, s19 offen offset:32')
        a(f's_add_u32 s19, s19, {16*8192}')
    for i in range(20): a(f'v_mov_b32 v{vM+i}, 0')
    for i in range(4): a(f'v_mov_b32 v{vQB+i}, 0'); a(f'v_mov_b32 v{vKM+i}, 0'); a(f'v_mov_b32 v{vVM+i}, 0')
    sS, sMem, sQkv, sPart, sKx, sVx, sSpin = 24, 25, 26, 27, 28, 29, 30
    for s in (sS, sMem, sQkv, sPart, sKx, sVx): a(f's_mov_b32 s{s}, 0')
    a('s_mov_b32 s32, 0x00ff00ff'); a('s_mov_b32 s33, 0x00ff00ff')
    a('s_mov_b32 s34, -1'); a('s_mov_b32 s35, 0')
    a('s_mov_b32 s36, 0xffff'); a('s_mov_b32 s37, 0')
    a('s_mov_b32 s38, 0x3db504f3')
    a('s_mov_b32 s39, 0x3fb8aa3b')
    a(f's_mov_b32 s40, {16*16384}')
    a(f's_mov_b32 s41, {16*4096}')
    def prefetch_x():
        a(f'buffer_load_dwordx4 {vr(vKX,4)}, v{vKxOff}, {WS}, s{sKx} offen')
        a(f's_add_u32 s42, s{sKx}, s40')
        a(f'buffer_load_dwordx4 {vr(vKX+4,4)}, v{vKxOff}, {WS}, s42 offen')
        a(f'buffer_load_dwordx2 {vr(vVX,2)}, v{vVxOff}, {WS}, s{sVx} offen')
        a(f'buffer_load_dwordx2 {vr(vVX+2,2)}, v{vVxOff}, {WS}, s{sVx} offen offset:32')
        a(f's_add_u32 s42, s{sVx}, s41')
        a(f'buffer_load_dwordx2 {vr(vVX+4,2)}, v{vVxOff}, {WS}, s42 offen')
        a(f'buffer_load_dwordx2 {vr(vVX+6,2)}, v{vVxOff}, {WS}, s42 offen offset:32')
    prefetch_x()
    a('s_waitcnt vmcnt(0)')
    def maxtree(regs, dst):
        regs = list(regs)
        a(f'v_max3_u32 v{dst}, v{regs[0]}, v{regs[1]}, v{regs[2]}')
        regs = regs[3:]
        while len(regs) >= 2:
            a(f'v_max3_u32 v{dst}, v{dst}, v{regs[0]}, v{regs[1]}')
            regs = regs[2:]
        if regs:
            a(f'v_max_u32 v{dst}, v{dst}, v{regs[0]}')
    def spin_guard(Lloop, Lout):
        a(f's_add_u32 s{sSpin}, s{sSpin}, 1')
        a(f's_cmp_lt_u32 s{sSpin}, {SPIN_MAX}')
        a(f's_cbranch_scc1 {Lloop}')
    def canon(r):
        a(f'v_cmp_eq_u32 vcc, -1, v{r}')
        a.nop(2)
        a(f'v_cndmask_b32 v{r}, v{r}, v{vCan}, vcc')
    a.label('Lr_step')
    a(f's_mov_b32 s{sSpin}, 0')
    a('s_mov_b64 exec, 1')
    a.label('Lr_p1')
    a(f'buffer_load_dword v{T}, v{vProbe1}, {WS}, s{sMem} offen sc1')
    a('s_waitcnt vmcnt(0)')
    a(f'v_cmp_eq_u32 vcc, -1, v{T}')
    a('s_cbranch_vccz Lr_p1o')
    spin_guard('Lr_p1', None)
    a.label('Lr_p1o')
    a('s_mov_b64 exec, s[32:33]')
    a.label('Lr_b1')
    for t in range(5):
        a(f'buffer_load_dwordx4 {vr(vM+4*t,4)}, v{vMemOff}, {WS}, s{sMem} offen offset:{512*t} sc1')
    a('s_waitcnt vmcnt(0)')
    maxtree(range(vM, vM+20), T)
    a(f'v_cmp_eq_u32 vcc, -1, v{T}')
    a('s_cbranch_vccz Lr_b1o')
    spin_guard('Lr_b1', None)
    a.label('Lr_b1o')
    a('s_mov_b64 exec, -1')
    for t in range(5):
        c = '0' if t == 0 else None
        for (acc, A, B) in ((vAq, vWq+4*t, vM+4*t), (vAk, vWk+4*t, vM+4*t), (vAv, vM+4*t, vWv+4*t)):
            cc = '0' if t == 0 else vr(acc,4)
            a(f'v_mfma_f32_16x16x32_bf16 {vr(acc,4)}, {vr(A,4)}, {vr(B,4)}, {cc}')
    a.nop(8)
    for i, acc in enumerate((vAq, vAk, vAv)):
        a(f'ds_write_b128 v{vLw1}, {vr(acc,4)} offset:{1024*i}')
    a('s_waitcnt lgkmcnt(0)')
    a('s_barrier')
    a(f's_cmp_eq_u32 s{sWv}, 3')
    a('s_cbranch_scc1 Lr_s1done')
    for i in range(4):
        a(f'ds_read_b128 {vr(vR+4*i,4)}, v{vLr1} offset:{3072*i}')
    a('s_waitcnt lgkmcnt(0)')
    for k in range(4):
        a(f'v_add_f32 v{vR+k}, v{vR+k}, v{vR+4+k}')
        a(f'v_add_f32 v{vR+8+k}, v{vR+8+k}, v{vR+12+k}')
    for k in range(4):
        a(f'v_add_f32 v{vR+k}, v{vR+k}, v{vR+8+k}')
    a(f'v_cvt_pk_bf16_f32 v{T}, v{vR}, v{vR+1}')
    a(f'v_cvt_pk_bf16_f32 v{T+1}, v{vR+2}, v{vR+3}')
    canon(T); canon(T+1)
    a('s_mov_b64 exec, s[34:35]')
    a(f'buffer_store_dwordx2 {vr(T,2)}, v{vStQ}, {WS}, s{sQkv} offen sc1')
    a('s_mov_b64 exec, -1')
    a.label('Lr_s1done')
    a(f's_mov_b32 s{sSpin}, 0')
    a.label('Lr_b2')
    a('s_mov_b64 exec, s[32:33]')
    a(f'buffer_load_dwordx4 {vr(vQB,4)}, v{vQkOff}, {WS}, s{sQkv} offen sc1')
    a(f'buffer_load_dwordx4 {vr(vKM,4)}, v{vQkOff}, {WS}, s{sQkv} offen offset:2048 sc1')
    a('s_mov_b64 exec, s[34:35]')
    a(f'buffer_load_dwordx2 {vr(vVM,2)}, v{vVmOff}, {WS}, s{sQkv} offen sc1')
    a(f'buffer_load_dwordx2 {vr(vVM+2,2)}, v{vVmOff}, {WS}, s{sQkv} offen offset:256 sc1')
    a('s_mov_b64 exec, -1')
    a('s_waitcnt vmcnt(0)')
    maxtree(list(range(vQB, vQB+4)) + list(range(vKM, vKM+4)) + list(range(vVM, vVM+4)), T)
    a(f'v_cmp_eq_u32 vcc, -1, v{T}')
    a('s_cbranch_vccz Lr_b2o')
    spin_guard('Lr_b2', None)
    a.label('Lr_b2o')
    a(f'v_mfma_f32_16x16x32_bf16 {vr(vS,4)}, {vr(vKM,4)}, {vr(vQB,4)}, 0')
    a(f'v_mfma_f32_16x16x32_bf16 {vr(vS+4,4)}, {vr(vKX,4)}, {vr(vQB,4)}, 0')
    a(f'v_mfma_f32_16x16x32_bf16 {vr(vS+8,4)}, {vr(vKX+4,4)}, {vr(vQB,4)}, 0')
    a.nop(8)
    for i in range(3):
        a(f'ds_write_b128 v{vLw2}, {vr(vS+4*i,4)} offset:{1024*i}')
    a('s_waitcnt lgkmcnt(0)')
    a('s_barrier')
    for i in range(12):
        a(f'ds_read_b128 {vr(vR+4*i,4)}, v{vLr2} offset:{1024*i}')
    a('s_waitcnt lgkmcnt(0)')
    for k in range(12):
        a(f'v_add_f32 v{vR+k}, v{vR+k}, v{vR+12+k}')
        a(f'v_add_f32 v{vR+24+k}, v{vR+24+k}, v{vR+36+k}')
    for k in range(12):
        a(f'v_add_f32 v{vS+k}, v{vR+k}, v{vR+24+k}')
    for k in range(0, 12, 2):
        a(f'v_cvt_pk_bf16_f32 v{T}, v{vS+k}, v{vS+k+1}')
        a(f'v_lshlrev_b32 v{vS+k}, 16, v{T}')
        a(f'v_and_b32 v{vS+k+1}, 0xffff0000, v{T}')
        a(f'v_mul_f32 v{vS+k}, s38, v{vS+k}')
        a(f'v_mul_f32 v{vS+k+1}, s38, v{vS+k+1}')
        a(f'v_cvt_pk_bf16_f32 v{T}, v{vS+k}, v{vS+k+1}')
        a(f'v_lshlrev_b32 v{vS+k}, 16, v{T}')
        a(f'v_and_b32 v{vS+k+1}, 0xffff0000, v{T}')
    a('s_mov_b32 exec_lo, 0')
    for k in range(4):
        a(f'v_mov_b32 v{vS+k}, 0xff800000')
    a('s_mov_b64 exec, -1')
    a(f'v_max3_f32 v{T}, v{vS}, v{vS+1}, v{vS+2}')
    for k in range(3, 11, 2):
        a(f'v_max3_f32 v{T}, v{T}, v{vS+k}, v{vS+k+1}')
    a(f'v_max_f32 v{T}, v{T}, v{vS+11}')
    def xreduce(op):
        for sw in ('v_permlane16_swap_b32', 'v_permlane32_swap_b32'):
            a(f'v_mov_b32 v{T+1}, v{T}')
            a.nop(2)
            a(f'{sw} v{T}, v{T+1}')
            a.nop(1)
            a(f'{op} v{T}, v{T}, v{T+1}')
    xreduce('v_max_f32')
    for k in range(12):
        a(f'v_sub_f32 v{vS+k}, v{vS+k}, v{T}')
        a(f'v_mul_f32 v{vS+k}, s39, v{vS+k}')
        a(f'v_exp_f32 v{vS+k}, v{vS+k}')
    a.nop(1)
    a(f'v_add_f32 v{T}, v{vS}, v{vS+1}')
    for k in range(2, 12):
        a(f'v_add_f32 v{T}, v{T}, v{vS+k}')
    xreduce('v_add_f32')
    a(f'v_rcp_f32 v{T}, v{T}')
    a.nop(1)
    for k in range(12):
        a(f'v_mul_f32 v{vS+k}, v{vS+k}, v{T}')
    a(f'v_cvt_pk_bf16_f32 v{vPBm}, v{vS}, v{vS+1}')
    a(f'v_cvt_pk_bf16_f32 v{vPBm+1}, v{vS+2}, v{vS+3}')
    for k in range(4):
        a(f'v_cvt_pk_bf16_f32 v{vPBx+k}, v{vS+4+2*k}, v{vS+5+2*k}')
    a.nop(2)
    for u in range(2):
        a(f'v_mfma_f32_16x16x32_bf16 {vr(vO+4*u,4)}, {vr(vVX+4*u,4)}, {vr(vPBx,4)}, 0')
    for u in range(2):
        a(f'v_mfma_f32_16x16x16_bf16 {vr(vO+4*u,4)}, {vr(vVM+2*u,2)}, {vr(vPBm,2)}, {vr(vO+4*u,4)}')
    a(f's_add_u32 s{sKx}, s{sKx}, {32*16384}')
    a(f's_add_u32 s{sVx}, s{sVx}, 64')
    a.nop(6)
    a(f's_cmp_eq_u32 s{sS}, 63')
    a('s_cbranch_scc1 Lr_nopf')
    prefetch_x()
    a.label('Lr_nopf')
    for k in range(4):
        a(f'v_cvt_pk_bf16_f32 v{vOB+k}, v{vO+2*k}, v{vO+2*k+1}')
    a.nop(2)
    for t in range(5):
        a(f'v_mfma_f32_16x16x32_bf16 {vr(vP+4*t,4)}, {vr(vWo+4*t,4)}, {vr(vOB,4)}, 0')
    a.nop(8)
    for t in range(5):
        a(f'ds_write_b128 v{vLw3}, {vr(vP+4*t,4)} offset:{1024*t}')
    a('s_waitcnt lgkmcnt(0)')
    a('s_barrier')
    a(f's_cmp_eq_u32 s{sWv}, 3')
    a('s_cbranch_scc1 Lr_s2done')
    a(f'v_cmp_gt_u32 vcc, 160, v0')
    a('s_and_saveexec_b64 s[44:45], vcc')
    for i in range(4):
        a(f'ds_read_b128 {vr(vR+4*i,4)}, v{vLr3} offset:{5120*i}')
    a('s_waitcnt lgkmcnt(0)')
    for k in range(4):
        a(f'v_add_f32 v{vR+k}, v{vR+k}, v{vR+4+k}')
        a(f'v_add_f32 v{vR+8+k}, v{vR+8+k}, v{vR+12+k}')
    for k in range(4):
        a(f'v_add_f32 v{vR+k}, v{vR+k}, v{vR+8+k}')
    for k in range(4):
        canon(vR+k)
    a(f'buffer_store_dwordx4 {vr(vR,4)}, v{vStP}, {WS}, s{sPart} offen sc1')
    a('s_mov_b64 exec, -1')
    a.label('Lr_s2done')
    a(f's_cmp_eq_u32 s{sRed}, 0')
    a('s_cbranch_scc1 Lr_s3done')
    a(f's_mov_b32 s{sSpin}, 0')
    a.label('Lr_b3')
    a(f's_mov_b32 s42, s{sPart}')
    for i in range(8):
        a(f'buffer_load_dwordx4 {vr(vR+4*i,4)}, v{vRedOff}, {WS}, s42 offen sc1')
        if i < 7: a(f's_add_u32 s42, s42, {4*20480}')
    a('s_waitcnt vmcnt(0)')
    maxtree(range(vR, vR+32), T)
    a(f'v_cmp_eq_u32 vcc, -1, v{T}')
    a('s_cbranch_vccz Lr_b3o')
    spin_guard('Lr_b3', None)
    a.label('Lr_b3o')
    for k in range(4):
        for i in range(4):
            a(f'v_add_f32 v{vR+8*i+k}, v{vR+8*i+k}, v{vR+8*i+4+k}')
        a(f'v_add_f32 v{vR+k}, v{vR+k}, v{vR+8+k}')
        a(f'v_add_f32 v{vR+16+k}, v{vR+16+k}, v{vR+24+k}')
        a(f'v_add_f32 v{vR+k}, v{vR+k}, v{vR+16+k}')
    for sw in ('v_permlane16_swap_b32', 'v_permlane32_swap_b32'):
        for k in range(4):
            a(f'v_mov_b32 v{vR+4+k}, v{vR+k}')
        a.nop(2)
        for k in range(4):
            a(f'{sw} v{vR+k}, v{vR+4+k}')
        a.nop(1)
        for k in range(4):
            a(f'v_add_f32 v{vR+k}, v{vR+k}, v{vR+4+k}')
    a(f'v_cvt_pk_bf16_f32 v{T}, v{vR}, v{vR+1}')
    a(f'v_cvt_pk_bf16_f32 v{T+1}, v{vR+2}, v{vR+3}')
    canon(T); canon(T+1)
    a('s_mov_b64 exec, s[36:37]')
    a(f'buffer_store_dwordx2 {vr(T,2)}, v{vStM}, {WS}, s{sMem} offen sc1')
    a('s_mov_b64 exec, -1')
    a.label('Lr_s3done')
    a(f's_add_u32 s{sMem}, s{sMem}, 10240')
    a(f's_add_u32 s{sQkv}, s{sQkv}, {32*6144}')
    a(f's_add_u32 s{sPart}, s{sPart}, {32*20480}')
    a(f's_add_u32 s{sS}, s{sS}, 1')
    a(f's_cmp_lt_u32 s{sS}, 64')
    a('s_cbranch_scc1 Lr_step')
    a.label('Lr_end')
    a('s_endpgm')
    return name, vend
```

```python
import sys
from emit import *
from k_prep import gen_prep, N_PREP
from k_qkv import gen_qkv
from k_rec import gen_rec
from k_att import gen_att
from k_fin import gen_fin

HEADER = open('gated_mix__spectral_gfnet__memory_aug_recurrent_mem_tr__prompt.s.ref').read().split('; Override launch')[0]

def build(with_fft=True):
    a = Asm()
    launches = []
    descs = []
    n, v = gen_prep(a); descs.append(kernel_desc(n, v)); launches.append((n, N_PREP, 256, 0))
    n, v, l = gen_qkv(a); descs.append(kernel_desc(n, v)); launches.append((n, 1536, 256, l))
    if with_fft:
        from k_fft import gen_f1, gen_f2
        n, v, l = gen_f1(a); descs.append(kernel_desc(n, v)); launches.append((n, 384, 256, l))
        n, v, l, g = gen_f2(a); descs.append(kernel_desc(n, v)); launches.append((n, g, 256, l))
    n, v = gen_rec(a); descs.append(kernel_desc(n, v)); launches.append((n, 256, 256, 90112))
    n, v = gen_att(a); descs.append(kernel_desc(n, v)); launches.append((n, 512, 256, 0))
    n, v, l = gen_fin(a, with_fft); descs.append(kernel_desc(n, v)); launches.append((n, 320, 256, l))
    out = HEADER
    for (n, g, b, l) in launches:
        out += f'; @launch kernel={n} grid=({g},1,1) block=({b},1,1) lds={l}\n'
    out += '.amdgcn_target "amdgcn-amd-amdhsa--gfx950"\n.text\n'
    out += a.text()
    out += '.section .rodata,"a"\n'
    for d in descs:
        out += '.p2align 6\n' + d
    return out

if __name__ == '__main__':
    with_fft = '--nofft' not in sys.argv
    s = build(with_fft)
    path = 'gated_mix__spectral_gfnet__memory_aug_recurrent_mem_tr__prompt.s'
    open(path, 'w').write(s)
    print('wrote', len(s), 'bytes')
```
